```python
import torch

def _softmax(x, axis=-1):
    return torch.softmax(x, dim=axis)

def _gelu(x):
    return torch.nn.functional.gelu(x, approximate='tanh')

def _silu(x):
    return torch.nn.functional.silu(x)

def _sigmoid(x):
    return torch.sigmoid(x)

def _layernorm(x, axis=-1, eps=1e-05):
    m = x.mean(dim=axis, keepdim=True)
    v = x.var(dim=axis, keepdim=True, unbiased=False)
    return (x - m) / torch.sqrt(v + eps)

def _scatter_add(tgt, idx, src, axis=0):
    return tgt.clone().index_add_(axis, idx, src)

def _segment_sum(src, seg, n):
    out = torch.zeros((n,) + src.shape[1:], dtype=src.dtype)
    return out.index_add_(0, seg, src)

def _pad(x, pw):
    flat = tuple((v for pair in reversed(pw) for v in pair))
    return torch.nn.functional.pad(x, flat)
kernel_name = 'adaLN_cond__gqa_block_cached__swiglu_ffn__decode'

def setup_inputs():

    _w = lambda a: (lambda t: t.to(torch.bfloat16) if t.is_floating_point() else t)(torch.as_tensor(a))

    def _A_setup():
        B, Sq, D = (1, 1, 640)
        Hq, Hkv, Sk, Dh = (32, 32, 16384, 128)
        assert Hq % Hkv == 0, (Hq, Hkv)
        return {'x': _w((lambda *s: torch.randn(*s, dtype=torch.bfloat16) * 0.05)(B, Sq, D)), 'k_cache': _w((lambda *s: torch.randn(*s, dtype=torch.bfloat16) * 0.8)(B, Hkv, Sk, Dh)), 'v_cache': _w((lambda *s: torch.randn(*s, dtype=torch.bfloat16) * 1.6)(B, Hkv, Sk, Dh)), 'wq': _w((lambda *s: torch.randn(*s, dtype=torch.bfloat16) * 0.8)(D, Hq * Dh) * D ** (-0.5)), 'wo': _w((lambda *s: torch.randn(*s, dtype=torch.bfloat16) * 1.6)(Hq * Dh, D) * (Hq * Dh) ** (-0.5))}
    _A_in = _A_setup()

    def _B_setup():
        B, S, D, F = (1, 1, 640, 1728)
        return {'x': _w((lambda *s: torch.randn(*s, dtype=torch.bfloat16) * 0.05)(B, S, D)), 'w_gate': _w((lambda *s: torch.randn(*s, dtype=torch.bfloat16) * 0.05)(D, F)), 'w_up': _w((lambda *s: torch.randn(*s, dtype=torch.bfloat16) * 0.05)(D, F)), 'w_down': _w((lambda *s: torch.randn(*s, dtype=torch.bfloat16) * 0.05)(F, D))}
    _B_in = _B_setup()
    return {'A_x': _A_in['x'], 'A_k_cache': _A_in['k_cache'], 'A_v_cache': _A_in['v_cache'], 'A_wq': _A_in['wq'], 'A_wo': _A_in['wo'], 'B_x': _B_in['x'], 'B_w_gate': _B_in['w_gate'], 'B_w_up': _B_in['w_up'], 'B_w_down': _B_in['w_down'], 'c': _w((lambda *s: torch.randn(*s, dtype=torch.bfloat16) * 0.2)(1, 640) * 8.0), 'w_mod': _w((lambda *s: torch.randn(*s, dtype=torch.bfloat16) * 0.2)(640, 6 * 640) * 640 ** (-0.5) * 8.0)}

def reference(A_x, A_k_cache, A_v_cache, A_wq, A_wo, B_x, B_w_gate, B_w_up, B_w_down, c, w_mod):

    def _A_ref(x, k_cache, v_cache, wq, wo):
        B, Sq, D = x.shape
        Hq, Dh = (32, 128)
        Hkv = k_cache.shape[1]
        rep = Hq // Hkv
        q = (lambda x, *d: x.permute(*d))((x @ wq).reshape(B, Sq, Hq, Dh), 0, 2, 1, 3)
        k = (lambda x, n, axis: torch.repeat_interleave(x, n, dim=axis))(k_cache, rep, axis=1)
        v = (lambda x, n, axis: torch.repeat_interleave(x, n, dim=axis))(v_cache, rep, axis=1)
        scores = torch.einsum('bhqd,bhkd->bhqk', q, k) * Dh ** (-0.5)
        p = _softmax(scores, axis=-1)
        o = torch.einsum('bhqk,bhkd->bhqd', p, v)
        return (lambda x, *d: x.permute(*d))(o, 0, 2, 1, 3).reshape(B, Sq, Hq * Dh) @ wo

    def _B_ref(x, w_gate, w_up, w_down):
        g = _silu(x @ w_gate)
        u = x @ w_up
        return g * u @ w_down
    x = A_x
    mod = (_silu(c) @ w_mod).reshape(c.shape[0], 6, 1, -1)
    sa, ca, ga, sb, cb, gb = (mod[:, 0].clone(), mod[:, 1].clone(), mod[:, 2].clone(), mod[:, 3].clone(), mod[:, 4].clone(), mod[:, 5].clone())
    h = _layernorm(x, axis=-1) * (1 + ca) + sa
    x = x + ga * _A_ref(h, A_k_cache, A_v_cache, A_wq, A_wo)
    h = _layernorm(x, axis=-1) * (1 + cb) + sb
    x = x + gb * _B_ref(h, B_w_gate, B_w_up, B_w_down)
    return x
```

```python
import sys
NAME='adaLN_cond__gqa_block_cached__swiglu_ffn__decode'
def gen(nwg=256, nw=8, D=16, pol='nt', pat='il', blk=1, xcdmap=0, vg=None, lds=0):
    chunk=(128<<20)//nwg
    nload=chunk//(nw*1024)
    assert nload%D==0
    nit=nload//D
    L=[]
    A=L.append
    A(f'; @launch grid=({nwg},1,1) block=({nw*64},1,1) lds={lds}')
    A('.amdgcn_target "amdgcn-amd-amdhsa--gfx950"')
    A('.text'); A(f'.globl {NAME}_kernel'); A('.p2align 8'); A(f'.type {NAME}_kernel,@function'); A(f'{NAME}_kernel:')
    A(f's_cmp_ge_u32 s2, {nwg}'); A('s_cbranch_scc1 L_end')
    A('s_memrealtime s[24:25]')
    A('s_load_dwordx4 s[4:7], s[0:1], 8')
    A('s_load_dwordx2 s[20:21], s[0:1], 104')
    A('v_lshrrev_b32 v1, 6, v0')
    A('v_and_b32 v2, 63, v0')
    A('v_lshlrev_b32 v2, 4, v2')
    if pat=='il':
        wstride=1024*blk
    else:
        wstride=chunk//nw
    A(f's_mov_b32 s3, {wstride}')
    A('v_mul_lo_u32 v1, v1, s3')
    A('v_add_u32 v1, v1, v2')
    if xcdmap:
        A('s_and_b32 s22, s2, 7'); A('s_lshr_b32 s23, s2, 3'); A(f's_mul_i32 s22, s22, {nwg//8}'); A('s_add_u32 s22, s22, s23')
    else:
        A('s_mov_b32 s22, s2')
    A(f's_mul_i32 s23, s22, {chunk}')
    A('s_waitcnt lgkmcnt(0)')
    A('s_add_u32 s8, s4, s23'); A('s_addc_u32 s9, s5, 0'); A(f's_mov_b32 s10, {chunk}'); A('s_mov_b32 s11, 0x20000')
    A('s_add_u32 s12, s6, s23'); A('s_addc_u32 s13, s7, 0'); A(f's_mov_b32 s14, {chunk}'); A('s_mov_b32 s15, 0x20000')
    A('v_mov_b32 v3, 0')
    base=8
    def soff_seq(i):
        if pat=='il':
            return (i//blk)*(nw*blk*1024)+(i%blk)*1024
        return i*1024
    it_stride=soff_seq(D)
    def load(i,srd,sreg):
        o=soff_seq(i)
        A(f's_add_u32 s17, {sreg}, {o}')
        A(f'buffer_load_dwordx4 v[{base+4*i}:{base+4*i+3}], v1, s[{srd}:{srd+3}], s17 offen {pol}')
    def consume(i):
        for j in range(4): A(f'v_xor_b32 v3, v3, v{base+4*i+j}')
    A('s_mov_b32 s16, 0')
    for i in range(D): load(i,8,'s16')
    A(f's_mov_b32 s16, {it_stride}')
    A(f's_mov_b32 s18, {nit-1}')
    if nit>1:
        A('L_k:')
        for i in range(D):
            A(f's_waitcnt vmcnt({D-1})'); consume(i); load(i,8,'s16')
        A(f's_add_u32 s16, s16, {it_stride}')
        A('s_sub_u32 s18, s18, 1'); A('s_cmp_lg_u32 s18, 0'); A('s_cbranch_scc1 L_k')
    A('s_mov_b32 s16, 0')
    for i in range(D):
        A(f's_waitcnt vmcnt({D-1})'); consume(i); load(i,12,'s16')
    A('s_memrealtime s[26:27]')
    A(f's_mov_b32 s16, {it_stride}')
    A(f's_mov_b32 s18, {nit-1}')
    if nit>1:
        A('L_v:')
        for i in range(D):
            A(f's_waitcnt vmcnt({D-1})'); consume(i); load(i,12,'s16')
        A(f's_add_u32 s16, s16, {it_stride}')
        A('s_sub_u32 s18, s18, 1'); A('s_cmp_lg_u32 s18, 0'); A('s_cbranch_scc1 L_v')
    for i in range(D):
        A(f's_waitcnt vmcnt({D-1-i})'); consume(i)
    A('s_barrier')
    A('s_memrealtime s[28:29]')
    A('s_waitcnt lgkmcnt(0)')
    A('s_add_u32 s20, s20, 0x10000000'); A('s_addc_u32 s21, s21, 0')
    A('s_lshl_b32 s3, s2, 5')
    A('v_mov_b32 v4, s24'); A('v_mov_b32 v5, s25'); A('v_mov_b32 v6, s26'); A('v_mov_b32 v7, s27')
    A('v_mov_b32 v8, s28'); A('v_mov_b32 v9, s29'); A('v_mov_b32 v10, v3'); A('v_mov_b32 v11, 0')
    A('v_mov_b32 v2, s3')
    A('v_cmp_eq_u32 vcc, 0, v0'); A('s_and_saveexec_b64 s[30:31], vcc'); A('s_cbranch_execz L_end')
    A('global_store_dwordx4 v2, v[4:7], s[20:21]')
    A('global_store_dwordx2 v2, v[8:9], s[20:21] offset:16')
    A('L_end:'); A('s_endpgm')
    nv=vg or max(base+4*D,16)
    A('.section .rodata,"a"'); A('.p2align 6'); A(f'.amdhsa_kernel {NAME}_kernel')
    A(f'  .amdhsa_next_free_vgpr {nv}'); A('  .amdhsa_next_free_sgpr 40'); A(f'  .amdhsa_accum_offset {(nv+3)//4*4}')
    A('  .amdhsa_group_segment_fixed_size 0'); A('  .amdhsa_kernarg_size 112'); A('  .amdhsa_user_sgpr_count 2')
    A('  .amdhsa_user_sgpr_kernarg_segment_ptr 1'); A('  .amdhsa_system_sgpr_workgroup_id_x 1'); A('.end_amdhsa_kernel')
    return '\n'.join(L)+'\n'
if __name__=='__main__':
    cfgs={
     's_nw8_d16_nt':dict(nw=8,D=16,pol='nt'),
     's_nw8_d16_def':dict(nw=8,D=16,pol=''),
     's_nw8_d8_nt':dict(nw=8,D=8,pol='nt'),
     's_nw8_d32_nt':dict(nw=8,D=32,pol='nt'),
     's_nw4_d16_nt':dict(nw=4,D=16,pol='nt'),
     's_nw16_d8_nt':dict(nw=16,D=8,pol='nt'),
     's_nw8_d16_nt_wc':dict(nw=8,D=16,pol='nt',pat='wc'),
     's_nw8_d16_nt_b4':dict(nw=8,D=16,pol='nt',blk=4),
     's_nw8_d16_nt_x':dict(nw=8,D=16,pol='nt',xcdmap=1),
     's_nw8_d16_sc1':dict(nw=8,D=16,pol='sc1'),
     's_nw8_d16_all':dict(nw=8,D=16,pol='sc0 sc1 nt'),
     's_nw8_d16_sc1nt':dict(nw=8,D=16,pol='sc1 nt'),
    }
    for k,v in cfgs.items():
        v.setdefault('lds',90000)
        open(f'work/{k}.s','w').write(gen(**v))
    print(' '.join(f'work/{k}.s' for k in cfgs))
```

```python
from gen_stream import gen
cfgs={}
for nw,D in [(4,16),(4,32),(4,8),(8,8),(8,16)]:
    for blk in [1,2,4,8,16]:
        if blk>D: continue
        cfgs[f's_nw{nw}_d{D}_b{blk}']=dict(nw=nw,D=D,pol='nt',blk=blk)
for k,v in cfgs.items():
    v.setdefault('lds',90000)
    open(f'work/{k}.s','w').write(gen(**v))
import json
print(' '.join(f'work/{k}.s' for k in cfgs))
print(json.dumps([f'work/{k}.s' for k in cfgs]))
```
